```python
import torch

def _softmax(x, axis=-1):
    return torch.softmax(x, dim=axis)
def _gelu(x):
    return torch.nn.functional.gelu(x, approximate="tanh")
def _silu(x):
    return torch.nn.functional.silu(x)
def _sigmoid(x):
    return torch.sigmoid(x)
def _layernorm(x, axis=-1, eps=1e-5):
    m = x.mean(dim=axis, keepdim=True)
    v = x.var(dim=axis, keepdim=True, unbiased=False)
    return (x - m) / torch.sqrt(v + eps)
def _scatter_add(tgt, idx, src, axis=0):
    return tgt.clone().index_add_(axis, idx, src)
def _segment_sum(src, seg, n):
    out = torch.zeros((n,) + src.shape[1:], dtype=src.dtype)
    return out.index_add_(0, seg, src)
def _pad(x, pw):
    flat = tuple(v for pair in reversed(pw) for v in pair)
    return torch.nn.functional.pad(x, flat)

kernel_name = 'standalone__sliding_window_attn__prompt'

def setup_inputs():

    _w = (lambda a: (lambda t: t.to(torch.bfloat16) if t.is_floating_point() else t)(torch.as_tensor(a)))
    B, H, S, D = 1, 32, 2048, 192
    return {
        "q": _w((lambda *s: torch.randn(*s, dtype=torch.bfloat16) * 0.8)(B, H, S, D)),
        "k": _w((lambda *s: torch.randn(*s, dtype=torch.bfloat16) * 0.8)(B, H, S, D)),
        "v": _w((lambda *s: torch.randn(*s, dtype=torch.bfloat16) * 0.05)(B, H, S, D)),
        "window": 256,
    }

def reference(q, k, v, window):
    B, H, S, D = q.shape
    scale = D ** -0.5
    scores = torch.einsum("bhqd,bhkd->bhqk", q, k) * scale
    idx = torch.arange(S)
    mask = (idx[:, None] - idx[None, :] >= 0) & (idx[:, None] - idx[None, :] < window)
    scores = torch.where(mask[None, None], scores, -1e9)
    p = _softmax(scores, axis=-1)
    return torch.einsum("bhqk,bhkd->bhqd", p, v)
```

```python
import sys, re

NAME = "standalone__sliding_window_attn__prompt"
HEADER = open("cdna_kernels/%s.s.ref" % NAME).read().split("; Override launch")[0]

OPT = dict(order="mirror",
           nt_q=0, nt_kv=0, nt_o=0, compute=1, stamps=0)
for a in sys.argv[2:]:
    k, v = a.split("=")
    OPT[k] = int(v) if v.lstrip("-").isdigit() else v

TILE = 12288
STAGE = 2 * TILE
R = 6
RING = R * STAGE
SCRATCH = RING
LDS_BYTES = RING + 3072
NEG = 0xf149f2ca
import struct, math
C_SCALE = struct.unpack("<I", struct.pack("<f", (192 ** -0.5) * math.log2(math.e)))[0]

def S(i, k=0): return 16 * i + k
QB = 144
KB = 192
def O(dt, k=0): return 144 + 16 * dt + k
V_OFF = [240, 241, 242]
V_AD = [243, 244, 245, 246]
V_VA00 = 247
V_M = 248
V_L = 249
V_T0, V_T1, V_T2, V_T3 = 250, 251, 252, 253
V_LANE = 254

s_q, s_k, s_v, s_o = 4, 6, 8, 10
SRD = 12
OSRD = 16
s_w = 20
s_n = 21
s_dl = 22
s_rng = 24
s_b2 = 26
s_rng2 = 28
s_sw = 30
s_ld = 31
s_ldlim = 32
s_scr = 33
s_rs = 34
s_c = 35
s_vm = 36
s_t0, s_t1, s_t2, s_t3, s_t4, s_t5 = 37, 38, 39, 40, 41, 42
s_cnt = 43
s_ldbase = 44
s_4k, s_8k = 45, 46
s_ost = 47
s_msk = 48

class Asm:
    def __init__(self):
        self.l = []
        self.lds_q = []
    def __call__(self, s):
        self.l.append("    " + s)
    def label(self, s):
        self.l.append(s + ":")
    def c(self, s):
        self.l.append("    ; " + s)
    def lds(self, s, tag):
        assert len(self.lds_q) < 15, "too many LDS ops outstanding"
        self(s)
        self.lds_q.append(tag)
    def wait_lds(self, tags):
        idx = -1
        for t in tags:
            for p, q in enumerate(self.lds_q):
                if q == t:
                    idx = max(idx, p)
        if idx >= 0:
            n = len(self.lds_q) - 1 - idx
            self("s_waitcnt lgkmcnt(%d)" % n)
            self.lds_q = self.lds_q[idx + 1:]
    def wait_lds_all(self):
        if self.lds_q:
            self("s_waitcnt lgkmcnt(0)")
            self.lds_q = []

a = Asm()
def vr(b, n): return "v[%d:%d]" % (b, b + n - 1)
def sr(b, n): return "s[%d:%d]" % (b, b + n - 1)

def dma_issue():
    a("s_cmp_eq_u32 s%d, s%d" % (s_n, s_sw))
    a("s_cselect_b64 %s, %s, %s" % (sr(SRD, 2), sr(s_b2, 2), sr(SRD, 2)))
    a("s_cselect_b64 %s, %s, %s" % (sr(s_rng, 2), sr(s_rng2, 2), sr(s_rng, 2)))
    a("s_sub_u32 s%d, s%d, s%d" % (s_t0, s_n, s_rng))
    a("s_cmp_le_u32 s%d, s%d" % (s_t0, s_rng + 1))
    a("s_cselect_b32 m0, s%d, s%d" % (s_ld, s_scr))
    a("s_cselect_b32 s%d, %d, 0" % (SRD + 2, TILE))
    pol = " nt" if OPT["nt_kv"] else ""
    for jj in range(3):
        off = " offset:%d" % (1024 * jj) if jj else ""
        a("buffer_load_dwordx4 v%d, %s, 0 offen%s%s lds" % (V_OFF[jj], sr(SRD, 4), off, pol))
    a("s_add_u32 s%d, s%d, s%d" % (SRD, SRD, s_dl))
    a("s_addc_u32 s%d, s%d, s%d" % (SRD + 1, SRD + 1, s_dl + 1))
    a("s_add_u32 s%d, s%d, 1" % (s_n, s_n))
    a("s_add_u32 s%d, s%d, %d" % (s_ld, s_ld, STAGE))
    a("s_cmp_eq_u32 s%d, s%d" % (s_ld, s_ldlim))
    a("s_cselect_b32 s%d, s%d, s%d" % (s_ld, s_ldbase, s_ld))

def sync(n=12):
    assert not a.lds_q or all(t.startswith("w") for t in a.lds_q)
    a("s_waitcnt vmcnt(%d)" % n)
    a("s_barrier")

def rs_advance_salu():
    a("s_add_u32 s%d, s%d, %d" % (s_t2, s_rs, STAGE))
    a("s_cmp_eq_u32 s%d, %d" % (s_t2, RING))
    a("s_cselect_b32 s%d, 0, s%d" % (s_t2, s_t2))
    a("s_sub_u32 s%d, s%d, s%d" % (s_t1, s_t2, s_rs))
    a("s_mov_b32 s%d, s%d" % (s_rs, s_t2))

def addr_advance_valu():
    return ["v_add_u32 v%d, s%d, v%d" % (r, s_t1, r) for r in V_AD]

def p_valu(i):
    X = lambda k: S(i, k)
    fma = lambda k: "v_fma_f32 v%d, v%d, s%d, -v%d" % (X(k), X(k), s_c, V_M)
    ex = lambda k: "v_exp_f32 v%d, v%d" % (X(k), X(k))
    add = lambda k: "v_add_f32 v%d, v%d, v%d" % (V_L, V_L, X(k))
    cvt = lambda j: "v_cvt_pk_bf16_f32 v%d, v%d, v%d" % (X(j), X(2 * j), X(2 * j + 1))
    out = [fma(0), fma(1), ex(0), ex(1)]
    for j in range(8):
        if j < 7:
            out += [fma(2 * j + 2), fma(2 * j + 3)]
        else:
            out += ["s_nop 0"]
        out += [add(2 * j), add(2 * j + 1), cvt(j)]
        if j < 7:
            out += [ex(2 * j + 2), ex(2 * j + 3)]
    return out

def max_valu(i):
    return ["v_max3_f32 v%d, v%d, v%d, v%d" % (V_M, V_M, S(i, 2 * k), S(i, 2 * k + 1)) for k in range(8)]

def stamp(idx):
    pass

a.l.append(HEADER.rstrip("\n"))
a.l.append("; Override launch geometry by editing the next line. Harness parses it; keep it on one line.")
a.l.append("; @launch grid=(256,1,1) block=(512,1,1) lds=%d" % LDS_BYTES)
a.l.append('.amdgcn_target "amdgcn-amd-amdhsa--gfx950"')
a.l.append(".text")
a.l.append(".globl %s_kernel" % NAME)
a.l.append(".p2align 8")
a.l.append(".type %s_kernel,@function" % NAME)
a.label("%s_kernel" % NAME)

a("s_cmp_ge_u32 s2, 256")
a("s_cbranch_scc1 L_end")
a("s_load_dwordx4 s[4:7], s[0:1], 0")
a("s_load_dwordx2 s[8:9], s[0:1], 16")
a("s_load_dwordx2 s[10:11], s[0:1], 32")
a("v_lshrrev_b32 v1, 6, v0")
a("v_and_b32 v%d, 63, v0" % V_LANE)
a("v_readfirstlane_b32 s%d, v1" % s_w)
a("s_and_b32 s%d, s2, 7" % s_t0)
a("s_lshr_b32 s%d, s2, 3" % s_t1)
a("s_lshr_b32 s%d, s%d, 3" % (s_t2, s_t1))
a("s_lshl_b32 s%d, s%d, 2" % (s_t0, s_t0))
a("s_add_u32 s%d, s%d, s%d" % (s_t0, s_t0, s_t2))
a("s_mul_i32 s%d, s%d, 786432" % (s_t0, s_t0))
a("s_and_b32 s%d, s%d, 7" % (s_t1, s_t1))
a("s_and_b32 s%d, s%d, 3" % (s_t2, s_w))
a("s_lshl_b32 s%d, s%d, 3" % (s_t3, s_t2))
a("s_mul_i32 s%d, s%d, 3072" % (s_t2, s_t2))
for jj in range(3):
    if jj == 0:
        a("v_mul_u32_u24 v1, 2731, v%d" % V_LANE)
    else:
        a("v_add_u32 v1, %d, v%d" % (64 * jj, V_LANE))
        a("v_mul_u32_u24 v1, 2731, v1")
    a("v_lshrrev_b32 v1, 16, v1")
    a("v_add_u32 v1, s%d, v1" % s_t3)
    a("v_bfe_u32 v2, v1, 1, 1")
    a("v_bfe_u32 v3, v1, 2, 2")
    a("v_lshl_or_b32 v2, v2, 2, v3")
    a("v_xor_b32 v2, v%d, v2" % V_LANE)
    a("v_lshl_add_u32 v%d, v2, 4, s%d" % (V_OFF[jj], s_t2))
if OPT["order"] == "mirror":
    a("s_and_b32 s%d, s%d, 1" % (s_t3, s_t1))
else:
    a("s_cmp_lg_u32 s%d, 0" % s_t1)
    a("s_cselect_b32 s%d, 1, 0" % s_t3)
a("s_lshl_b32 s%d, s%d, 3" % (s_cnt, s_t1))
a("s_add_u32 s%d, s%d, 7" % (s_t5, s_cnt))
a("s_sub_u32 s%d, s%d, 8" % (s_t4, s_cnt))
a("s_cmp_eq_u32 s%d, 1" % s_t3)
a("s_cselect_b32 s%d, s%d, s%d" % (s_t4, s_t4, s_t5))
a("s_cselect_b32 s%d, s%d, s%d" % (s_t5, s_cnt, s_t5))
a("s_mov_b32 s%d, %d" % (s_dl, TILE))
a("s_cselect_b32 s%d, s%d, 0x%x" % (s_dl, s_dl, -TILE & 0xffffffff))
a("s_cselect_b32 s%d, 0, -1" % (s_dl + 1))
a("s_sub_u32 s%d, 7, s%d" % (s_ost, s_w))
a("s_cmp_eq_u32 s%d, 1" % s_t3)
a("s_cselect_b32 s%d, s%d, s%d" % (s_ost, s_w, s_ost))
a("s_add_u32 s%d, s%d, s%d" % (s_ost, s_ost, s_cnt))
a("s_mul_i32 s%d, s%d, %d" % (s_ost, s_ost, TILE))
a("s_add_u32 s%d, s%d, s%d" % (s_ost, s_ost, s_t0))
a("s_mul_i32 s%d, s%d, %d" % (s_t4, s_t4, TILE))
a("s_add_u32 s%d, s%d, s%d" % (s_t4, s_t4, s_t0))
a("s_mul_i32 s%d, s%d, %d" % (s_t5, s_t5, TILE))
a("s_add_u32 s%d, s%d, s%d" % (s_t5, s_t5, s_t0))
a("s_cmp_eq_u32 s%d, 0" % s_t1)
a("s_cselect_b32 s%d, 7, 15" % (s_rng2 + 1))
a("s_mov_b32 s%d, 9" % s_rng2)
a("s_mov_b32 s%d, 0" % s_rng)
a("s_lshl_b32 s%d, 2, s%d" % (s_vm, s_rng2 + 1))
a("s_sub_u32 s%d, s%d, 1" % (s_vm, s_vm))
a("s_lshr_b32 s%d, s%d, s%d" % (s_vm, s_vm, s_w))
a("s_cmp_ge_u32 s%d, 4" % s_w)
a("s_cselect_b32 s%d, 7, s%d" % (s_rng + 1, s_rng2 + 1))
a("s_cselect_b32 s%d, 9, 0x7fff" % s_sw)
a("s_cselect_b32 s%d, %d, 0" % (s_ldbase, TILE))
a("s_cselect_b32 s%d, s%d, s%d" % (s_t0, s_t5, s_t4))
a("s_add_u32 s%d, s%d, s%d" % (s_ldbase, s_ldbase, s_t2))
a("s_mov_b32 s%d, s%d" % (s_ld, s_ldbase))
a("s_add_u32 s%d, s%d, %d" % (s_ldlim, s_ldbase, RING))
a("s_mov_b32 s%d, %d" % (s_scr, SCRATCH))
a("s_mov_b32 s%d, 0" % s_n)
a("s_mov_b32 s%d, 0x20000" % (SRD + 3))
a("s_mov_b32 s%d, 0x20000" % (OSRD + 3))
a("s_mov_b32 s%d, %d" % (OSRD + 2, TILE))
a("s_waitcnt lgkmcnt(0)")
a("s_cmp_ge_u32 s%d, 4" % s_w)
a("s_cselect_b64 %s, %s, %s" % (sr(SRD, 2), sr(s_q, 2), sr(s_k, 2)))
a("s_add_u32 s%d, s%d, s%d" % (SRD, SRD, s_t0))
a("s_addc_u32 s%d, s%d, 0" % (SRD + 1, SRD + 1))
a("s_add_u32 s%d, s%d, s%d" % (s_b2, s_v, s_t4))
a("s_addc_u32 s%d, s%d, 0" % (s_b2 + 1, s_v + 1))
a("s_add_u32 s%d, s%d, s%d" % (OSRD, s_o, s_ost))
a("s_addc_u32 s%d, s%d, 0" % (OSRD + 1, s_o + 1))
a("s_mov_b32 s%d, %d" % (s_cnt, R - 1))
a.label("L_pro")
dma_issue()
a("s_sub_u32 s%d, s%d, 1" % (s_cnt, s_cnt))
a("s_cmp_lg_u32 s%d, 0" % s_cnt)
a("s_cbranch_scc1 L_pro")

a("s_mov_b32 s%d, 0x%08x" % (s_c, C_SCALE))
a("s_mov_b32 s%d, 4096" % s_4k)
a("s_mov_b32 s%d, 8192" % s_8k)
a("s_sub_u32 s%d, s%d, 6" % (s_t0, s_w))
a("s_cmp_ge_u32 s%d, 6" % s_w)
a("s_cselect_b32 s%d, s%d, s%d" % (s_t0, s_t0, s_w))
a("s_mul_i32 s%d, s%d, %d" % (s_rs, s_t0, STAGE))
a("s_mov_b32 s%d, s%d" % (s_ost, s_rs))
a("v_and_b32 v1, 31, v%d" % V_LANE)
a("v_lshrrev_b32 v2, 5, v%d" % V_LANE)
a("v_bfe_u32 v3, v1, 1, 1")
a("v_bfe_u32 v4, v1, 2, 2")
a("v_lshl_or_b32 v3, v3, 2, v4")
a("v_xor_b32 v3, v3, v2")
a("v_lshlrev_b32 v3, 4, v3")
a("v_mul_u32_u24 v4, 384, v1")
a("v_add3_u32 v%d, v3, v4, s%d" % (V_AD[0], s_rs))
for m in range(1, 4):
    a("v_xor_b32 v%d, %d, v%d" % (V_AD[m], 32 * m, V_AD[0]))
a("v_lshlrev_b32 v5, 2, v2")
a("v_sub_u32 v5, v1, v5")
a("v_bfe_u32 v6, v%d, 2, 2" % V_LANE)
a("v_lshl_add_u32 v7, v2, 2, v6")
a("v_mul_u32_u24 v7, 384, v7")
a("v_lshrrev_b32 v8, 1, v6")
a("v_lshl_or_b32 v8, v8, 2, v2")
a("v_bfe_u32 v9, v%d, 4, 1" % V_LANE)
a("v_bfe_u32 v10, v%d, 1, 1" % V_LANE)
a("v_lshl_or_b32 v9, v9, 1, v10")
a("v_xor_b32 v8, v8, v9")
a("v_lshl_add_u32 v7, v8, 4, v7")
a("v_and_b32 v10, 1, v%d" % V_LANE)
a("v_lshl_add_u32 v%d, v10, 3, v7" % V_VA00)
for k in range(16):
    cst = 8 * (k // 4) + (k % 4)
    a("v_cmp_gt_i32 %s, %d, v5" % (sr(s_msk + 2 * k, 2), cst))
a("s_cmp_eq_u32 s%d, 1" % s_t3)
a("s_cselect_b32 s%d, 0, 0x%08x" % (s_t0, NEG))
a("s_cselect_b32 s%d, 0x%08x, 0" % (s_t1, NEG))
a("v_mov_b32 v%d, s%d" % (V_T0, s_t0))
a("v_mov_b32 v%d, s%d" % (V_T1, s_t1))
a("v_mov_b32 v%d, 0x%08x" % (V_M, NEG))
a("v_mov_b32 v%d, 0" % V_L)
for k in range(16):
    a("v_cndmask_b32 v%d, v%d, v%d, %s" % (S(0, k), V_T1, V_T0, sr(s_msk + 2 * k, 2)))
    a("v_cndmask_b32 v%d, v%d, v%d, %s" % (S(8, k), V_T0, V_T1, sr(s_msk + 2 * k, 2)))

a("s_cmp_eq_u32 s%d, 0" % s_w)
a("s_cbranch_scc1 L_qk0")
a("s_mov_b32 s%d, s%d" % (s_cnt, s_w))
a.label("L_pre")
sync()
dma_issue()
a("s_sub_u32 s%d, s%d, 1" % (s_cnt, s_cnt))
a("s_cmp_lg_u32 s%d, 0" % s_cnt)
a("s_cbranch_scc1 L_pre")

ool = []

def mfma(d, aa, bb, c):
    cs = "0" if c is None else vr(c, 16)
    a("v_mfma_f32_32x32x16_bf16 %s, %s, %s, %s" % (vr(d, 16), vr(aa, 4), vr(bb, 4), cs))

for i in range(9):
    a.label("L_qk%d" % i)
    sync()
    dma_issue()
    if not OPT["compute"]:
        continue
    if i > 0:
        a("s_bitcmp0_b32 s%d, %d" % (s_vm, i))
        a("s_cbranch_scc1 L_qk%d_inv" % i)
    def kread(ks):
        a.lds("ds_read_b128 %s, v%d offset:%d" % (vr(KB + 4 * ks, 4), V_AD[ks % 4], (ks // 4) * 128), "k%d" % ks)
    def qread(ks):
        a.lds("ds_read_b128 %s, v%d offset:%d" % (vr(QB + 4 * ks, 4), V_AD[ks % 4], TILE + (ks // 4) * 128), "q%d" % ks)
    pend = []
    if i == 0:
        for ks in range(7):
            qread(ks); kread(ks)
        pend = list(range(7, 12))
    else:
        for ks in range(12):
            kread(ks)
    rs_advance_salu()
    fill = []
    if i > 0:
        for x in max_valu(i - 1):
            a(x)
    for ks in range(12):
        a.wait_lds(["k%d" % ks, "q%d" % ks])
        first_c = S(i) if i in (0, 8) else None
        mfma(S(i), KB + 4 * ks, QB + 4 * ks, first_c if ks == 0 else S(i))
        if pend:
            p = pend.pop(0)
            qread(p); kread(p)
        if ks == 6:
            if i < 8:
                for x in addr_advance_valu():
                    a(x)
            else:
                a("v_add_u32 v%d, s%d, v%d" % (V_AD[0], s_rs, V_VA00))
                a("v_xor_b32 v%d, 64, v%d" % (V_AD[1], V_AD[0]))
                a("v_xor_b32 v%d, 32, v%d" % (V_AD[2], V_AD[0]))
                a("v_xor_b32 v%d, 0x60, v%d" % (V_AD[3], V_AD[0]))
    if i > 0:
        a.label("L_qk%d_join" % i)
        blk = ["L_qk%d_inv:" % i]
        sv = a.l; a.l = blk
        rs_advance_salu()
        for x in max_valu(i - 1):
            a(x)
        for k in range(16):
            a("v_mov_b32 v%d, 0x%08x" % (S(i, k), NEG))
        if i < 8:
            for x in addr_advance_valu():
                a(x)
        else:
            a("v_add_u32 v%d, s%d, v%d" % (V_AD[0], s_rs, V_VA00))
            a("v_xor_b32 v%d, 64, v%d" % (V_AD[1], V_AD[0]))
            a("v_xor_b32 v%d, 32, v%d" % (V_AD[2], V_AD[0]))
            a("v_xor_b32 v%d, 0x60, v%d" % (V_AD[3], V_AD[0]))
        a("s_branch L_qk%d_join" % i)
        a.l = sv
        ool.append(blk)
    if i == 8:
        a("s_nop 7")
        a("s_nop 3")
        for x in max_valu(8):
            a(x)
        a("v_mov_b32 v%d, v%d" % (V_T0, V_M))
        a("s_nop 1")
        a("v_permlane32_swap_b32 v%d, v%d" % (V_T0, V_M))
        a("v_max_f32 v%d, v%d, v%d" % (V_M, V_T0, V_M))
        a("v_mul_f32 v%d, s%d, v%d" % (V_M, s_c, V_M))
        for x in p_valu(0):
            a(x)

for i in range(9):
    a.label("L_pv%d" % i)
    sync()
    dma_issue()
    if not OPT["compute"]:
        continue
    if i > 0:
        a("s_mov_b32 s%d, %d" % (s_cnt, 8 - i))
        a("s_bitcmp0_b32 s%d, %d" % (s_vm, i))
        a("s_cbranch_scc1 L_pv_idle")
    if i == 0:
        bufs = [O(3, 0), O(3, 4), O(3, 8), O(3, 12), O(4, 0), O(4, 4), O(4, 8), O(4, 12), O(5, 0), O(5, 4), S(0, 8), S(0, 12)]
    else:
        six = [S(0, 0), S(0, 4), S(0, 8), S(0, 12), S(1, 8), S(1, 12)]
        bufs = [six[n % 6] for n in range(12)]
    def vread(n):
        dt, m = n // 2, n % 2
        for e in range(2):
            ad = V_AD[(dt & 1) + 2 * e]
            off = TILE + m * 6144 + e * 3072 + (dt >> 1) * 128
            a.lds("ds_read_b64_tr_b16 %s, v%d offset:%d" % (vr(bufs[n] + 2 * e, 2), ad, off), "v%d" % n)
    for n in range(6):
        vread(n)
    rs_advance_salu()
    val = p_valu(i + 1) if i < 8 else []
    head, val = val[:8], val[8:]
    for x in head:
        a(x)
    per = [(len(val) * (g + 1)) // 12 - (len(val) * g) // 12 for g in range(12)]
    for n in range(12):
        dt, m = n // 2, n % 2
        a.wait_lds(["v%d" % n])
        cc = None if (i == 0 and m == 0) else O(dt)
        mfma(O(dt), bufs[n], S(i, 4 * m), cc)
        if n + 6 < 12:
            vread(n + 6)
        if n == 6 and i < 8:
            for x in addr_advance_valu():
                a(x)
        for _ in range(per[n]):
            a(val.pop(0))

a.label("L_e1")
a("s_cmp_gt_u32 s%d, 6" % s_w)
a("s_cbranch_scc1 L_e1b")
sync(12)
a.label("L_e1b")
if OPT["compute"]:
    a("v_mov_b32 v%d, v%d" % (V_T0, V_L))
    a("v_and_b32 v1, 31, v%d" % V_LANE)
    a("v_mul_u32_u24 v2, 384, v1")
    a("v_permlane32_swap_b32 v%d, v%d" % (V_T0, V_L))
    a("v_add_f32 v%d, v%d, v%d" % (V_L, V_T0, V_L))
    a("v_and_b32 v3, 7, v1")
    a("v_rcp_f32 v%d, v%d" % (V_T2, V_L))
    a("v_lshl_add_u32 v2, v3, 4, v2")
    a("v_lshrrev_b32 v3, 5, v%d" % V_LANE)
    a("v_lshl_add_u32 v2, v3, 3, v2")
    a("v_add_u32 v8, s%d, v2" % s_ost)
    for x in range(1, 8):
        a("v_xor_b32 v%d, %d, v8" % (8 + x, 16 * x))
    for dt in range(6):
        for aa in range(4):
            b = O(dt, 4 * aa)
            a("v_pk_mul_f32 %s, %s, %s op_sel_hi:[1,0]" % (vr(b, 2), vr(b, 2), vr(V_T2, 2)))
            a("v_pk_mul_f32 %s, %s, %s op_sel_hi:[1,0]" % (vr(b + 2, 2), vr(b + 2, 2), vr(V_T2, 2)))
            a("v_cvt_pk_bf16_f32 v%d, v%d, v%d" % (b, b, b + 1))
            a("v_cvt_pk_bf16_f32 v%d, v%d, v%d" % (b + 1, b + 2, b + 3))
            if len(a.lds_q) >= 12:
                a.lds_q = a.lds_q[-8:]
                a("s_waitcnt lgkmcnt(8)")
            a.lds("ds_write_b64 v%d, %s offset:%d" % (8 + (dt & 1) * 4 + aa, vr(b, 2), (dt >> 1) * 128), "w")
for jj in range(3):
    if jj == 0:
        a("v_mul_u32_u24 v1, 2731, v%d" % V_LANE)
    else:
        a("v_add_u32 v1, %d, v%d" % (64 * jj, V_LANE))
        a("v_mul_u32_u24 v1, 2731, v1")
    a("v_lshrrev_b32 v1, 16, v1")
    a("v_xor_b32 v1, v%d, v1" % V_LANE)
    a("v_lshl_add_u32 v%d, v1, 4, s%d" % (4 + jj, s_ost))
a("v_lshlrev_b32 v7, 4, v%d" % V_LANE)
a.wait_lds_all()
a.label("L_e2")
a("s_cmp_gt_u32 s%d, 5" % s_w)
a("s_cbranch_scc1 L_e2b")
sync(9)
a.label("L_e2b")
for n in range(12):
    a.lds("ds_read_b128 %s, v%d offset:%d" % (vr(16 + 4 * n, 4), 4 + n % 3, 1024 * n), "o%d" % n)
pol = " nt" if OPT["nt_o"] else ""
for n in range(12):
    a.wait_lds(["o%d" % n])
    so = ["0", "s%d" % s_4k, "s%d" % s_8k][n // 4]
    off = " offset:%d" % (1024 * (n % 4)) if n % 4 else ""
    a("buffer_store_dwordx4 %s, v7, %s, %s offen%s%s" % (vr(16 + 4 * n, 4), sr(OSRD, 4), so, off, pol))
a.label("L_post")
a("s_cmp_gt_u32 s%d, 4" % s_w)
a("s_cbranch_scc1 L_end")
a("s_waitcnt vmcnt(18)")
a("s_barrier")
a("s_add_u32 s%d, s%d, 1" % (s_w, s_w))
a("s_branch L_post")
a.label("L_end")
a("s_endpgm")

if OPT["compute"]:
    a.label("L_pv_idle")
    a("s_cmp_eq_u32 s%d, 0" % s_cnt)
    a("s_cbranch_scc1 L_e1")
    sync()
    dma_issue()
    a("s_sub_u32 s%d, s%d, 1" % (s_cnt, s_cnt))
    a("s_branch L_pv_idle")
    for blk in ool:
        a.l += blk

a.l.append('.section .rodata,"a"')
a.l.append(".p2align 6")
a.l.append(".amdhsa_kernel %s_kernel" % NAME)
a.l.append("  .amdhsa_next_free_vgpr 256")
a.l.append("  .amdhsa_next_free_sgpr 96")
a.l.append("  .amdhsa_accum_offset 256")
a.l.append("  .amdhsa_group_segment_fixed_size 0")
a.l.append("  .amdhsa_kernarg_size 56")
a.l.append("  .amdhsa_user_sgpr_count 2")
a.l.append("  .amdhsa_user_sgpr_kernarg_segment_ptr 1")
a.l.append("  .amdhsa_system_sgpr_workgroup_id_x 1")
a.l.append(".end_amdhsa_kernel")
open(sys.argv[1], "w").write("\n".join(a.l) + "\n")
```

```python
import sys, struct, math

NAME = "standalone__sliding_window_attn__prompt"
HEADER = open("cdna_kernels/%s.s.ref" % NAME).read().split("; Override launch")[0]

OPT = dict(order="mirror", ld=3, r=5, ntq=0, ntk=0, ntv=0, ost=3, compute=1, stamps=0, cyc=1, prio=0, dmapos=1)
for x in sys.argv[2:]:
    k, v = x.split("=")
    OPT[k] = int(v) if v.lstrip("-").isdigit() else v

TILE = 12288
STAGE = 2 * TILE
LD = OPT["ld"]
R = OPT["r"]
assert R >= LD + 2
RING = R * STAGE
SCRATCH = RING
LDS_BYTES = RING + 3072
HEADB = 786432
NEG = 0xf149f2ca
C_SCALE = struct.unpack("<I", struct.pack("<f", (192 ** -0.5) * math.log2(math.e)))[0]
VMW = 3 * (LD - 1)
POL = {0: "", 1: " nt", 2: " sc1", 3: " sc0 sc1", 4: " sc1 nt", 5: " sc0 sc1 nt"}

def S(i, k=0): return 16 * i + k
QB = 144
KB = 192
def O(dt, k=0): return 144 + 16 * dt + k
V_OFF = [240, 241, 242]
V_AD = [243, 244, 245, 246]
V_VA00 = 247
V_M = 248
V_L = 249
V_T0, V_T1, V_T2, V_T3 = 250, 251, 252, 253
V_LANE = 254

s_q, s_k, s_v, s_o = 4, 6, 8, 10
SRD = 12; OSRD = 16
s_w = 20
s_off = 21
s_dl = 22
s_wrap = 23
s_val = 24
s_W = 25
s_b2 = 26
s_off2 = 28
s_swm = 29
s_fwd = 30
s_back = 31
s_ld = 32
s_scr = 33
s_rs = 34
s_c = 35
s_vm = 36
s_t0, s_t1, s_t2, s_t3, s_t4, s_t5 = 37, 38, 39, 40, 41, 42
s_cnt = 43
s_d = 44
s_4k, s_8k = 45, 46
s_ost = 47
s_msk = 48
s_hb = 83

class Asm:
    def __init__(self):
        self.l = []; self.q = []
    def __call__(self, s): self.l.append("    " + s)
    def label(self, s): self.l.append(s + ":")
    def lds(self, s, tag):
        if len(self.q) >= 15:
            self("s_waitcnt lgkmcnt(14)"); self.q = self.q[-14:]
        self(s); self.q.append(tag)
    def wait(self, tags):
        idx = -1
        for p, q in enumerate(self.q):
            if q in tags: idx = p
        if idx >= 0:
            self("s_waitcnt lgkmcnt(%d)" % (len(self.q) - 1 - idx))
            self.q = self.q[idx + 1:]
    def wait_all(self):
        if self.q:
            self("s_waitcnt lgkmcnt(0)"); self.q = []
a = Asm()
def vr(b, n): return "v[%d:%d]" % (b, b + n - 1)
def sr(b, n): return "s[%d:%d]" % (b, b + n - 1)

def stamp():
    if OPT["stamps"]:
        a("s_memrealtime s[80:81]")
        a("s_mov_b32 m0, s82")
        a("s_waitcnt lgkmcnt(0)"); a.q = []
        a("v_writelane_b32 v255, s80, m0")
        a("s_add_u32 s82, s82, 1")

def sync(n=VMW):
    stamp()
    a("s_waitcnt vmcnt(%d)" % n)
    a("s_barrier")
    if OPT["stamps"] == 2: stamp()

_lab = [0]
def dma_loads(jj):
    off = " offset:%d" % (1024 * jj) if jj else ""
    return "buffer_load_dwordx4 v%d, %s, s%d offen%s%s lds" % (V_OFF[jj], sr(SRD, 4), s_off, off, POL[OPT["ntk"]])

def dma_parts(bit, sw_possible=True):
    pre = []
    if sw_possible:
        pre += ["s_bitcmp1_b32 s%d, %d" % (s_swm, bit),
                "s_cselect_b64 %s, %s, %s" % (sr(SRD, 2), sr(s_b2, 2), sr(SRD, 2)),
                "s_cselect_b32 s%d, s%d, s%d" % (s_off, s_off2, s_off)]
    pre += ["s_bitcmp1_b32 s%d, %d" % (s_val, bit),
            "s_cselect_b32 m0, s%d, s%d" % (s_ld, s_scr),
            "s_cselect_b32 s%d, s%d, 0" % (SRD + 2, s_hb)]
    post = ["s_add_u32 s%d, s%d, s%d" % (s_off, s_off, s_dl),
            "s_add_u32 s%d, s%d, s%d" % (s_t0, s_off, s_wrap),
            "s_min_u32 s%d, s%d, s%d" % (s_off, s_off, s_t0),
            "s_bitcmp1_b32 s%d, %d" % (s_W, bit),
            "s_cselect_b32 s%d, s%d, s%d" % (s_t0, s_back, s_fwd),
            "s_add_u32 s%d, s%d, s%d" % (s_ld, s_ld, s_t0)]
    return pre, [dma_loads(j) for j in range(3)], post

def dma_now(bit, sw_possible=True):
    pre, lds, post = dma_parts(bit, sw_possible)
    for x in pre + lds + post: a(x)

def shift_masks():
    for r in (s_val, s_W, s_swm):
        a("s_lshr_b32 s%d, s%d, 1" % (r, r))

def adv_parts(bit):
    return (["s_bitcmp1_b32 s%d, %d" % (s_W, bit),
             "s_cselect_b32 s%d, s%d, s%d" % (s_d, s_back, s_fwd)],
            ["v_add_u32 v%d, s%d, v%d" % (r, s_d, r) for r in V_AD])

def p_valu(i):
    X = lambda k: S(i, k)
    fma = lambda k: "v_fma_f32 v%d, v%d, s%d, -v%d" % (X(k), X(k), s_c, V_M)
    ex = lambda k: "v_exp_f32 v%d, v%d" % (X(k), X(k))
    add = lambda k: "v_add_f32 v%d, v%d, v%d" % (V_L, V_L, X(k))
    cvt = lambda j: "v_cvt_pk_bf16_f32 v%d, v%d, v%d" % (X(j), X(2 * j), X(2 * j + 1))
    out = [fma(0), fma(1), ex(0), ex(1)]
    for j in range(8):
        if j < 7: out += [fma(2 * j + 2), fma(2 * j + 3)]
        else: out += ["s_nop 0"]
        out += [add(2 * j), add(2 * j + 1), cvt(j)]
        if j < 7: out += [ex(2 * j + 2), ex(2 * j + 3)]
    return out

def max_valu(i):
    return ["v_max3_f32 v%d, v%d, v%d, v%d" % (V_M, V_M, S(i, 2 * k), S(i, 2 * k + 1)) for k in range(8)]

def mfma(d, aa, bb, c):
    cs = "0" if c is None else vr(c, 16)
    a("v_mfma_f32_32x32x16_bf16 %s, %s, %s, %s" % (vr(d, 16), vr(aa, 4), vr(bb, 4), cs))

def spread(lst, gaps):
    out = {g: [] for g in gaps}
    n = len(gaps)
    for gi, g in enumerate(gaps):
        lo, hi = (len(lst) * gi) // n, (len(lst) * (gi + 1)) // n
        out[g] = lst[lo:hi]
    return out

def kread(ks, tag):
    return ("ds_read_b128 %s, v%d offset:%d" % (vr(KB + 4 * ks, 4), V_AD[ks % 4], (ks // 4) * 128), tag)
def qread(ks):
    return ("ds_read_b128 %s, v%d offset:%d" % (vr(QB + 4 * ks, 4), V_AD[ks % 4], TILE + (ks // 4) * 128), "q%d" % ks)
def vreads(n, buf, tag):
    dt, m = n // 2, n % 2
    out = []
    for e in range(2):
        ad = V_AD[(dt & 1) + 2 * e]
        off = TILE + m * 6144 + e * 3072 + (dt >> 1) * 128
        out.append(("ds_read_b64_tr_b16 %s, v%d offset:%d" % (vr(buf + 2 * e, 2), ad, off), tag))
    return out

def vaddr_init():
    return ["v_add_u32 v%d, s%d, v%d" % (V_AD[0], s_rs, V_VA00),
            "v_xor_b32 v%d, 64, v%d" % (V_AD[1], V_AD[0]),
            "v_xor_b32 v%d, 32, v%d" % (V_AD[2], V_AD[0]),
            "v_xor_b32 v%d, 0x60, v%d" % (V_AD[3], V_AD[0])]

a.l.append(HEADER.rstrip("\n"))
a.l.append("; Override launch geometry by editing the next line. Harness parses it; keep it on one line.")
a.l.append("; @launch grid=(256,1,1) block=(512,1,1) lds=%d" % LDS_BYTES)
a.l.append('.amdgcn_target "amdgcn-amd-amdhsa--gfx950"')
a.l.append(".text")
a.l.append(".globl %s_kernel" % NAME)
a.l.append(".p2align 8")
a.l.append(".type %s_kernel,@function" % NAME)
a.label("%s_kernel" % NAME)

a("s_cmp_ge_u32 s2, 256")
a("s_cbranch_scc1 L_end")
if OPT["stamps"]:
    a("s_mov_b32 s82, 0")
    a("v_mov_b32 v255, 0")
    a("s_load_dwordx2 s[84:85], s[0:1], 48")
    a("s_memtime s[92:93]")
    stamp()
a("s_load_dwordx4 s[4:7], s[0:1], 0")
a("s_load_dwordx2 s[8:9], s[0:1], 16")
a("s_load_dwordx2 s[10:11], s[0:1], 32")
a("v_lshrrev_b32 v1, 6, v0")
a("v_and_b32 v%d, 63, v0" % V_LANE)
a("v_readfirstlane_b32 s%d, v1" % s_w)
a("s_and_b32 s%d, s2, 7" % s_t0)
a("s_lshr_b32 s%d, s2, 3" % s_t1)
a("s_lshr_b32 s%d, s%d, 3" % (s_t2, s_t1))
a("s_lshl_b32 s%d, s%d, 2" % (s_t0, s_t0))
a("s_add_u32 s%d, s%d, s%d" % (s_t0, s_t0, s_t2))
a("s_mov_b32 s%d, %d" % (s_hb, HEADB))
a("s_mul_i32 s%d, s%d, s%d" % (s_t0, s_t0, s_hb))
a("s_and_b32 s%d, s%d, 7" % (s_t1, s_t1))
a("s_and_b32 s%d, s%d, 3" % (s_t2, s_w))
a("s_lshl_b32 s%d, s%d, 3" % (s_t3, s_t2))
a("s_mul_i32 s%d, s%d, 3072" % (s_t2, s_t2))
for jj in range(3):
    if jj == 0:
        a("v_mul_u32_u24 v1, 2731, v%d" % V_LANE)
    else:
        a("v_add_u32 v1, %d, v%d" % (64 * jj, V_LANE))
        a("v_mul_u32_u24 v1, 2731, v1")
    a("v_lshrrev_b32 v1, 16, v1")
    a("v_add_u32 v1, s%d, v1" % s_t3)
    a("v_bfe_u32 v2, v1, 1, 1")
    a("v_bfe_u32 v3, v1, 2, 2")
    a("v_lshl_or_b32 v2, v2, 2, v3")
    a("v_xor_b32 v2, v%d, v2" % V_LANE)
    a("v_lshl_add_u32 v%d, v2, 4, s%d" % (V_OFF[jj], s_t2))
if OPT["order"] == "mirror":
    a("s_and_b32 s%d, s%d, 1" % (s_t3, s_t1))
else:
    a("s_cmp_lg_u32 s%d, 0" % s_t1)
    a("s_cselect_b32 s%d, 1, 0" % s_t3)
a("s_lshl_b32 s%d, s%d, 3" % (s_cnt, s_t1))
a("s_add_u32 s%d, s%d, 7" % (s_t5, s_cnt))
a("s_sub_u32 s%d, s%d, 8" % (s_t4, s_cnt))
a("s_sub_u32 s%d, 7, s%d" % (s_ost, s_w))
a("s_mov_b32 s%d, %d" % (s_dl, TILE))
a("s_cmp_eq_u32 s%d, 1" % s_t3)
a("s_cselect_b32 s%d, s%d, s%d" % (s_t4, s_t4, s_t5))
a("s_cselect_b32 s%d, s%d, s%d" % (s_t5, s_cnt, s_t5))
a("s_cselect_b32 s%d, s%d, 0x%x" % (s_dl, s_dl, -TILE & 0xffffffff))
a("s_cselect_b32 s%d, 0x%x, s%d" % (s_wrap, -HEADB & 0xffffffff, s_hb))
a("s_cselect_b32 s%d, s%d, s%d" % (s_ost, s_w, s_ost))
a("s_add_u32 s%d, s%d, s%d" % (s_ost, s_ost, s_cnt))
a("s_mul_i32 s%d, s%d, %d" % (s_ost, s_ost, TILE))
a("s_add_u32 s%d, s%d, s%d" % (s_ost, s_ost, s_t0))
a("s_mul_i32 s%d, s%d, %d" % (s_off2, s_t4, TILE))
a("s_mul_i32 s%d, s%d, %d" % (s_t5, s_t5, TILE))
a("s_cmp_eq_u32 s%d, 0" % s_t1)
a("s_cselect_b32 s%d, 0xff, 0xffff" % s_vm) if False else None
a("s_mov_b32 s%d, 0xffff" % s_vm)
a("s_cselect_b32 s%d, 0xff, s%d" % (s_vm, s_vm))
if OPT["cyc"]:
    a("s_mov_b32 s%d, 0xffff" % s_t4)
else:
    a("s_mov_b32 s%d, s%d" % (s_t4, s_vm))
a("s_lshl_b32 s%d, s%d, 9" % (s_val, s_t4))
a("s_or_b32 s%d, s%d, 0xff" % (s_val, s_val))
a("s_lshr_b32 s%d, s%d, s%d" % (s_vm, s_vm, s_w))
a("s_cmp_ge_u32 s%d, 4" % s_w)
a("s_cselect_b32 s%d, s%d, s%d" % (s_val, s_val, s_t4))
a("s_cselect_b32 s%d, 0x200, 0" % s_swm)
a("s_cselect_b32 s%d, %d, 0" % (s_ld, TILE))
a("s_cselect_b32 s%d, s%d, s%d" % (s_off, s_t5, s_off2))
a("s_add_u32 s%d, s%d, s%d" % (s_ld, s_ld, s_t2))
Wpat = sum(1 << t for t in range(32) if t % R == R - 1)
a("s_mov_b32 s%d, 0x%x" % (s_W, Wpat))
a("s_mov_b32 s%d, %d" % (s_fwd, STAGE))
a("s_mov_b32 s%d, 0x%x" % (s_back, (STAGE - RING) & 0xffffffff))
a("s_mov_b32 s%d, %d" % (s_scr, SCRATCH))
a("s_mov_b32 s%d, 0x20000" % (SRD + 3))
a("s_mov_b32 s%d, 0x20000" % (OSRD + 3))
a("s_mov_b32 s%d, %d" % (OSRD + 2, TILE))
a("s_waitcnt lgkmcnt(0)")
a("s_cmp_ge_u32 s%d, 4" % s_w)
a("s_cselect_b64 %s, %s, %s" % (sr(SRD, 2), sr(s_q, 2), sr(s_k, 2)))
a("s_add_u32 s%d, s%d, s%d" % (SRD, SRD, s_t0))
a("s_addc_u32 s%d, s%d, 0" % (SRD + 1, SRD + 1))
a("s_add_u32 s%d, s%d, s%d" % (s_b2, s_v, s_t0))
a("s_addc_u32 s%d, s%d, 0" % (s_b2 + 1, s_v + 1))
a("s_add_u32 s%d, s%d, s%d" % (OSRD, s_o, s_ost))
a("s_addc_u32 s%d, s%d, 0" % (OSRD + 1, s_o + 1))
for n in range(LD):
    dma_now(n, sw_possible=False)
    if n < LD - 1:
        a("s_barrier")

a("s_mov_b32 s%d, 0x%08x" % (s_c, C_SCALE))
a("s_mov_b32 s%d, 4096" % s_4k)
a("s_mov_b32 s%d, 8192" % s_8k)
a("s_sub_u32 s%d, s%d, %d" % (s_t0, s_w, R))
a("s_cmp_ge_u32 s%d, %d" % (s_w, R))
a("s_cselect_b32 s%d, s%d, s%d" % (s_t0, s_t0, s_w))
a("s_mul_i32 s%d, s%d, %d" % (s_ost, s_t0, STAGE))
a("s_add_u32 s%d, s%d, %d" % (s_t0, s_t0, 9 % R))
a("s_sub_u32 s%d, s%d, %d" % (s_t1, s_t0, R))
a("s_cmp_ge_u32 s%d, %d" % (s_t0, R))
a("s_cselect_b32 s%d, s%d, s%d" % (s_t0, s_t1, s_t0))
a("s_mul_i32 s%d, s%d, %d" % (s_rs, s_t0, STAGE))
a("v_and_b32 v1, 31, v%d" % V_LANE)
a("v_lshrrev_b32 v2, 5, v%d" % V_LANE)
a("v_bfe_u32 v3, v1, 1, 1")
a("v_bfe_u32 v4, v1, 2, 2")
a("v_lshl_or_b32 v3, v3, 2, v4")
a("v_xor_b32 v3, v3, v2")
a("v_lshlrev_b32 v3, 4, v3")
a("v_mul_u32_u24 v4, 384, v1")
a("v_add3_u32 v%d, v3, v4, s%d" % (V_AD[0], s_ost))
for m in range(1, 4):
    a("v_xor_b32 v%d, %d, v%d" % (V_AD[m], 32 * m, V_AD[0]))
a("v_lshlrev_b32 v5, 2, v2")
a("v_sub_u32 v5, v1, v5")
a("v_bfe_u32 v6, v%d, 2, 2" % V_LANE)
a("v_lshl_add_u32 v7, v2, 2, v6")
a("v_mul_u32_u24 v7, 384, v7")
a("v_lshrrev_b32 v8, 1, v6")
a("v_lshl_or_b32 v8, v8, 2, v2")
a("v_bfe_u32 v9, v%d, 4, 1" % V_LANE)
a("v_bfe_u32 v10, v%d, 1, 1" % V_LANE)
a("v_lshl_or_b32 v9, v9, 1, v10")
a("v_xor_b32 v8, v8, v9")
a("v_lshl_add_u32 v7, v8, 4, v7")
a("v_and_b32 v10, 1, v%d" % V_LANE)
a("v_lshl_add_u32 v%d, v10, 3, v7" % V_VA00)
for k in range(16):
    cst = 8 * (k // 4) + (k % 4)
    a("v_cmp_gt_i32 %s, %d, v5" % (sr(s_msk + 2 * k, 2), cst))
a("s_cmp_eq_u32 s%d, 1" % s_t3)
a("s_cselect_b32 s%d, 0, 0x%08x" % (s_t0, NEG))
a("s_cselect_b32 s%d, 0x%08x, 0" % (s_t1, NEG))
a("v_mov_b32 v%d, s%d" % (V_T0, s_t0))
a("v_mov_b32 v%d, s%d" % (V_T1, s_t1))
a("v_mov_b32 v%d, 0x%08x" % (V_M, NEG))
a("v_mov_b32 v%d, 0" % V_L)
for k in range(16):
    a("v_cndmask_b32 v%d, v%d, v%d, %s" % (S(0, k), V_T1, V_T0, sr(s_msk + 2 * k, 2)))
    a("v_cndmask_b32 v%d, v%d, v%d, %s" % (S(8, k), V_T0, V_T1, sr(s_msk + 2 * k, 2)))

a("s_cmp_eq_u32 s%d, 0" % s_w)
a("s_cbranch_scc1 L_pre")
a("s_mov_b32 s%d, s%d" % (s_cnt, s_w))
a.label("L_idle")
sync()
dma_now(LD)
shift_masks()
a("s_sub_u32 s%d, s%d, 1" % (s_cnt, s_cnt))
a("s_cmp_lg_u32 s%d, 0" % s_cnt)
a("s_cbranch_scc1 L_idle")

def sw_poss(k):
    return 4 <= 9 - LD - k <= 7
def dma_needed(k):
    return k <= 20 - LD

ool = []
COMP = OPT["compute"]
a.label("L_pre")
sync()
if COMP:
    for ks in range(12): a.lds(*qread(ks))
dma_now(LD, sw_poss(0))
if COMP:
    for ks in range(12): a.lds(*kread(ks, "k0_%d" % ks))
    s_adv, v_adv = adv_parts(0)
    for x in s_adv + v_adv: a(x)

PVBUF = {}
for n in range(10): PVBUF[(0, n)] = KB + 4 * n
PVBUF[(0, 10)] = S(0, 8); PVBUF[(0, 11)] = S(0, 12)
six = [S(1, 8), S(1, 12), S(0, 8), S(0, 0), S(0, 12), S(0, 4)]
for i in range(1, 9):
    for n in range(12): PVBUF[(i, n)] = six[n % 6]

def emit_gap(items):
    for x in items:
        if isinstance(x, tuple): a.lds(*x)
        else: a(x)

def dma_gaps(gaps, k):
    if not dma_needed(k): return
    pre, lds, post = dma_parts(k + LD, sw_poss(k))
    p = OPT["dmapos"]
    gaps[p] += pre + [lds[0]]
    gaps[p + 1] += [lds[1]]
    gaps[p + 2] += [lds[2]] + post

for i in range(9):
    k = 1 + i
    a.label("L_qk%d" % i)
    sync()
    if not COMP:
        dma_now(k + LD, sw_poss(k)); continue
    if i > 0:
        a("s_bitcmp0_b32 s%d, %d" % (s_vm, i))
        a("s_cbranch_scc1 L_qk%d_inv" % i)
    q_at_entry = list(a.q)
    if i == 8 and OPT["prio"]: a("s_setprio 1")
    gaps = {g: [] for g in range(12)}
    if i < 8:
        for ks in range(12): gaps[ks].append(kread(ks, "k%d_%d" % (i + 1, ks)))
    else:
        gaps[0] += vaddr_init()
        for f in range(7): gaps[f + 2] += vreads(f, PVBUF[(0, f)], "v0_%d" % f)
    dma_gaps(gaps, k)
    if i > 0:
        for g, l in spread(max_valu(i - 1), [4, 5, 6, 7]).items(): gaps[g] += l
    if i < 8:
        s_adv, v_adv = adv_parts(k)
        gaps[10] += s_adv
        gaps[11] += v_adv
    for ks in range(12):
        if ks in (0, 6) or i == 0:
            hi = ks + 6 if i > 0 else ks + 1
            a.wait(["k%d_%d" % (i, x) for x in range(hi)] + ["q%d" % x for x in range(hi)])
        if i == 8 and ks == 2:
            a.wait(["k8_%d" % x for x in range(12)])
        first_c = S(i) if i in (0, 8) else None
        mfma(S(i), KB + 4 * ks, QB + 4 * ks, first_c if ks == 0 else S(i))
        emit_gap(gaps[ks])
    if i > 0:
        a.label("L_qk%d_join" % i)
        blk = ["L_qk%d_inv:" % i]
        sv, svq = a.l, list(a.q); a.l = blk; a.q = q_at_entry
        a.wait_all()
        a("s_nop 7"); a("s_nop 3")
        if dma_needed(k): dma_now(k + LD, sw_poss(k))
        for x in max_valu(i - 1): a(x)
        for kk in range(16): a("v_mov_b32 v%d, 0x%08x" % (S(i, kk), NEG))
        if i < 8:
            s_adv, v_adv = adv_parts(k)
            for x in s_adv + v_adv: a(x)
        else:
            for x in vaddr_init(): a(x)
            for f in range(7):
                for x in vreads(f, PVBUF[(0, f)], "v0_%d" % f): a.lds(*x)
            a.wait_all()
        a("s_branch L_qk%d_join" % i)
        a.l = sv; a.q = svq
        ool.append(blk)
    if i == 8:
        a("s_nop 7"); a("s_nop 3")
        for x in max_valu(8): a(x)
        a("v_mov_b32 v%d, v%d" % (V_T0, V_M))
        a("s_nop 1")
        a("v_permlane32_swap_b32 v%d, v%d" % (V_T0, V_M))
        a("v_max_f32 v%d, v%d, v%d" % (V_M, V_T0, V_M))
        a("v_mul_f32 v%d, s%d, v%d" % (V_M, s_c, V_M))
        for x in p_valu(0): a(x)
        if OPT["prio"]: a("s_setprio 0")

OA = [S(2, x) for x in range(8)]
RA = [S(2, 8), S(2, 9), S(2, 10)]
V_ST = S(2, 11)
TMP = [S(2, 12), S(2, 13), S(2, 14)]
def l_final():
    return ["v_mov_b32 v%d, v%d" % (V_T0, V_L),
            "v_and_b32 v%d, 31, v%d" % (TMP[0], V_LANE),
            "v_mul_u32_u24 v%d, 384, v%d" % (TMP[1], TMP[0]),
            "v_permlane32_swap_b32 v%d, v%d" % (V_T0, V_L),
            "v_and_b32 v%d, 7, v%d" % (TMP[2], TMP[0]),
            "v_add_f32 v%d, v%d, v%d" % (V_L, V_T0, V_L),
            "v_lshl_add_u32 v%d, v%d, 4, v%d" % (TMP[1], TMP[2], TMP[1]),
            "v_rcp_f32 v%d, v%d" % (V_T2, V_L),
            "v_lshrrev_b32 v%d, 5, v%d" % (TMP[2], V_LANE),
            "v_lshl_add_u32 v%d, v%d, 3, v%d" % (TMP[1], TMP[2], TMP[1]),
            "v_add_u32 v%d, s%d, v%d" % (OA[0], s_ost, TMP[1])] + \
           ["v_xor_b32 v%d, %d, v%d" % (OA[x], 16 * x, OA[0]) for x in range(1, 8)]
def o_out(dt):
    out = []
    for aa in range(4):
        b = O(dt, 4 * aa)
        out += ["v_mul_f32 v%d, v%d, v%d" % (b + x, V_T2, b + x) for x in range(4)]
        out += ["v_cvt_pk_bf16_f32 v%d, v%d, v%d" % (b, b, b + 1),
                "v_cvt_pk_bf16_f32 v%d, v%d, v%d" % (b + 1, b + 2, b + 3),
                ("ds_write_b64 v%d, %s offset:%d" % (OA[(dt & 1) * 4 + aa], vr(b, 2), (dt >> 1) * 128), "w")]
    return out
def ra_init():
    out = []
    for jj in range(3):
        if jj == 0: out += ["v_mul_u32_u24 v%d, 2731, v%d" % (TMP[0], V_LANE)]
        else: out += ["v_add_u32 v%d, %d, v%d" % (TMP[0], 64 * jj, V_LANE), "v_mul_u32_u24 v%d, 2731, v%d" % (TMP[0], TMP[0])]
        out += ["v_lshrrev_b32 v%d, 16, v%d" % (TMP[0], TMP[0]),
                "v_xor_b32 v%d, v%d, v%d" % (TMP[0], V_LANE, TMP[0]),
                "v_lshl_add_u32 v%d, v%d, 4, s%d" % (RA[jj], TMP[0], s_ost)]
    out += ["v_lshlrev_b32 v%d, 4, v%d" % (V_ST, V_LANE)]
    return out

def cond_sync(k, n):
    if 7 + k <= 24:
        sync(n)
    else:
        lab = "L_ns%d" % k
        a("s_cmp_gt_u32 s%d, %d" % (s_w, 24 - k))
        a("s_cbranch_scc1 %s" % lab)
        sync(n)
        a.label(lab)

def vm_at(k):
    last_issue_pos = min(k - 1, 20 - LD)
    return max(0, 3 * (last_issue_pos + LD - k))

for i in range(9):
    k = 10 + i
    a.label("L_pv%d" % i)
    cond_sync(k, vm_at(k))
    if not COMP:
        if dma_needed(k): dma_now(k + LD, sw_poss(k))
        continue
    if i > 0:
        a("s_bitcmp0_b32 s%d, %d" % (s_vm, i))
        a("s_cbranch_scc1 L_pv%d_inv" % i)
    gaps = {g: [] for g in range(12)}
    s_adv, v_adv = adv_parts(k - 1)
    if i == 0:
        for f in (7, 8, 9, 10, 11): gaps[f - 6] += vreads(f, PVBUF[(0, f)], "v0_%d" % f)
        gaps[5] += s_adv; gaps[6] += v_adv
        pv = spread(p_valu(1), list(range(0, 10)))
        dma_gaps(gaps, k)
        for g, l in pv.items(): gaps[g] += l
        gaps[9] += vreads(0, PVBUF[(1, 0)], "v1_0") + vreads(1, PVBUF[(1, 1)], "v1_1")
        gaps[10] += vreads(2, PVBUF[(1, 2)], "v1_2") + vreads(3, PVBUF[(1, 3)], "v1_3")
        gaps[11] += vreads(4, PVBUF[(1, 4)], "v1_4") + vreads(5, PVBUF[(1, 5)], "v1_5")
    else:
        for n in range(6): gaps[n] += vreads(n + 6, PVBUF[(i, n + 6)], "v%d_%d" % (i, n + 6))
        if i < 8:
            gaps[4] += s_adv; gaps[5] += v_adv
            for n in range(6, 12): gaps[n] += vreads(n - 6, PVBUF[(i + 1, n - 6)], "v%d_%d" % (i + 1, n - 6))
            dma_gaps(gaps, k)
            for g, l in spread(p_valu(i + 1), list(range(12))).items(): gaps[g] += l
        else:
            dma_gaps(gaps, k)
            for g, l in spread(l_final(), [0, 1, 2, 3]).items(): gaps[g] += l
            for g, l in spread(o_out(0), [4, 5, 6]).items(): gaps[g] += l
            for g, l in spread(o_out(1), [7, 8, 9]).items(): gaps[g] += l
            for g, l in spread(o_out(2), [10, 11]).items(): gaps[g] += l
    for n in range(12):
        dt, m = n // 2, n % 2
        if n % 2 == 0:
            a.wait(["v%d_%d" % (i, n), "v%d_%d" % (i, n + 1)])
        cc = None if (i == 0 and m == 0) else O(dt)
        mfma(O(dt), PVBUF[(i, n)], S(i, 4 * m), cc)
        emit_gap(gaps[n])

a.label("L_e")
cond_sync(19, vm_at(19))
if COMP:
    emit_gap(ra_init())
    emit_gap(o_out(3)); emit_gap(o_out(4)); emit_gap(o_out(5))
else:
    emit_gap(ra_init())
a.label("L_e2")
RB = 48
for n in range(12):
    a.lds("ds_read_b128 %s, v%d offset:%d" % (vr(RB + 4 * n, 4), RA[n % 3], 1024 * n), "o%d" % n)
for n in range(12):
    a.wait(["o%d" % n])
    so = ["0", "s%d" % s_4k, "s%d" % s_8k][n // 4]
    off = " offset:%d" % (1024 * (n % 4)) if n % 4 else ""
    a("buffer_store_dwordx4 %s, v%d, %s, %s offen%s%s" % (vr(RB + 4 * n, 4), V_ST, sr(OSRD, 4), so, off, POL[OPT["ost"]]))
if OPT["stamps"]:
    stamp()
    a("s_mov_b32 s86, s%d" % s_w)
a.label("L_post")
a("s_cmp_gt_u32 s%d, 4" % s_w)
a("s_cbranch_scc1 L_fin")
a("s_waitcnt vmcnt(%d)" % (vm_at(20) + 12))
a("s_barrier")
a("s_add_u32 s%d, s%d, 1" % (s_w, s_w))
a("s_branch L_post")
a.label("L_fin")
if OPT["stamps"]:
    a("s_waitcnt vmcnt(0)")
    a("s_mov_b32 s82, 63")
    a("s_memtime s[94:95]")
    stamp()
    a("s_sub_u32 s92, s94, s92")
    a("v_writelane_b32 v255, s92, 62")
    a("s_lshl_b32 s87, s2, 3")
    a("s_add_u32 s86, s86, s87")
    a("s_lshl_b32 s86, s86, 8")
    a("s_mov_b32 s88, s84")
    a("s_mov_b32 s89, s85")
    a("s_mov_b32 s90, 0x100000")
    a("s_mov_b32 s91, 0x20000")
    a("v_lshl_add_u32 v1, v%d, 2, s86" % V_LANE)
    a("buffer_store_dword v255, v1, s[88:91], 0 offen")
a.label("L_end")
a("s_endpgm")

if COMP:
    for i in range(1, 9):
        k = 10 + i
        if i > 1:
            lab = "L_nsx%d" % k
            if 7 + k > 24:
                a("s_cmp_gt_u32 s%d, %d" % (s_w, 24 - k))
                a("s_cbranch_scc1 %s" % lab)
            sync(vm_at(k))
            a.label(lab)
        a.label("L_pv%d_inv" % i)
        if dma_needed(k): dma_now(k + LD, sw_poss(k))
    a("s_waitcnt lgkmcnt(0)"); a.q = []
    a("s_nop 7"); a("s_nop 3")
    emit_gap(l_final())
    emit_gap(o_out(0)); emit_gap(o_out(1)); emit_gap(o_out(2))
    a("s_waitcnt lgkmcnt(0)"); a.q = []
    a("s_branch L_e")
    for blk in ool: a.l += blk

a.l.append('.section .rodata,"a"')
a.l.append(".p2align 6")
a.l.append(".amdhsa_kernel %s_kernel" % NAME)
a.l.append("  .amdhsa_next_free_vgpr 256")
a.l.append("  .amdhsa_next_free_sgpr 96")
a.l.append("  .amdhsa_accum_offset 256")
a.l.append("  .amdhsa_group_segment_fixed_size 0")
a.l.append("  .amdhsa_kernarg_size 56")
a.l.append("  .amdhsa_user_sgpr_count 2")
a.l.append("  .amdhsa_user_sgpr_kernarg_segment_ptr 1")
a.l.append("  .amdhsa_system_sgpr_workgroup_id_x 1")
a.l.append(".end_amdhsa_kernel")
open(sys.argv[1], "w").write("\n".join(a.l) + "\n")
```
